```python
import torch

def _softmax(x, axis=-1):
    return torch.softmax(x, dim=axis)

def _gelu(x):
    return torch.nn.functional.gelu(x, approximate='tanh')

def _silu(x):
    return torch.nn.functional.silu(x)

def _sigmoid(x):
    return torch.sigmoid(x)

def _layernorm(x, axis=-1, eps=1e-05):
    m = x.mean(dim=axis, keepdim=True)
    v = x.var(dim=axis, keepdim=True, unbiased=False)
    return (x - m) / torch.sqrt(v + eps)

def _scatter_add(tgt, idx, src, axis=0):
    return tgt.clone().index_add_(axis, idx, src)

def _segment_sum(src, seg, n):
    out = torch.zeros((n,) + src.shape[1:], dtype=src.dtype)
    return out.index_add_(0, seg, src)

def _pad(x, pw):
    flat = tuple((v for pair in reversed(pw) for v in pair))
    return torch.nn.functional.pad(x, flat)
kernel_name = 'adaLN_cond__mha_block_cached__glu_gated_geglu__decode'

def setup_inputs():

    _w = lambda a: (lambda t: t.to(torch.bfloat16) if t.is_floating_point() else t)(torch.as_tensor(a))

    def _A_setup():
        B, Sq, D = (1, 1, 640)
        H, Sk, Dh = (32, 32768, 128)
        return {'x': _w((lambda *s: torch.randn(*s, dtype=torch.bfloat16) * 0.1)(B, Sq, D)), 'k_cache': _w((lambda *s: torch.randn(*s, dtype=torch.bfloat16) * 0.8)(B, H, Sk, Dh)), 'v_cache': _w((lambda *s: torch.randn(*s, dtype=torch.bfloat16) * 3.2)(B, H, Sk, Dh)), 'wq': _w((lambda *s: torch.randn(*s, dtype=torch.bfloat16) * 0.8)(D, H * Dh) * D ** (-0.5)), 'wo': _w((lambda *s: torch.randn(*s, dtype=torch.bfloat16) * 3.2)(H * Dh, D) * (H * Dh) ** (-0.5))}
    _A_in = _A_setup()

    def _B_setup():
        B, S, Dm, Df = (1, 1, 640, 1728)
        return {'x': _w((lambda *s: torch.randn(*s, dtype=torch.bfloat16) * 0.1)(B, S, Dm)), 'w_gate': _w((lambda *s: torch.randn(*s, dtype=torch.bfloat16) * 3.2)(Dm, Df) * Dm ** (-0.5)), 'w_up': _w((lambda *s: torch.randn(*s, dtype=torch.bfloat16) * 3.2)(Dm, Df) * Dm ** (-0.5)), 'w_down': _w((lambda *s: torch.randn(*s, dtype=torch.bfloat16) * 3.2)(Df, Dm) * Df ** (-0.5))}
    _B_in = _B_setup()
    return {'A_x': _A_in['x'], 'A_k_cache': _A_in['k_cache'], 'A_v_cache': _A_in['v_cache'], 'A_wq': _A_in['wq'], 'A_wo': _A_in['wo'], 'B_x': _B_in['x'], 'B_w_gate': _B_in['w_gate'], 'B_w_up': _B_in['w_up'], 'B_w_down': _B_in['w_down'], 'c': _w((lambda *s: torch.randn(*s, dtype=torch.bfloat16) * 0.4)(1, 640) * 8.0), 'w_mod': _w((lambda *s: torch.randn(*s, dtype=torch.bfloat16) * 0.4)(640, 6 * 640) * 640 ** (-0.5) * 8.0)}

def reference(A_x, A_k_cache, A_v_cache, A_wq, A_wo, B_x, B_w_gate, B_w_up, B_w_down, c, w_mod):

    def _A_ref(x, k_cache, v_cache, wq, wo):
        B, Sq, D = x.shape
        H, Dh = (32, 128)
        q = (lambda x, *d: x.permute(*d))((x @ wq).reshape(B, Sq, H, Dh), 0, 2, 1, 3)
        scores = torch.einsum('bhqd,bhkd->bhqk', q, k_cache) * Dh ** (-0.5)
        p = _softmax(scores, axis=-1)
        o = torch.einsum('bhqk,bhkd->bhqd', p, v_cache)
        return (lambda x, *d: x.permute(*d))(o, 0, 2, 1, 3).reshape(B, Sq, H * Dh) @ wo

    def _B_ref(x, w_gate, w_up, w_down):
        g = torch.einsum('bsd,df->bsf', x, w_gate)
        u = torch.einsum('bsd,df->bsf', x, w_up)
        h = _gelu(g) * u
        return torch.einsum('bsf,fd->bsd', h, w_down)
    x = A_x
    mod = (_silu(c) @ w_mod).reshape(c.shape[0], 6, 1, -1)
    sa, ca, ga, sb, cb, gb = (mod[:, 0].clone(), mod[:, 1].clone(), mod[:, 2].clone(), mod[:, 3].clone(), mod[:, 4].clone(), mod[:, 5].clone())
    h = _layernorm(x, axis=-1) * (1 + ca) + sa
    x = x + ga * _A_ref(h, A_k_cache, A_v_cache, A_wq, A_wo)
    h = _layernorm(x, axis=-1) * (1 + cb) + sb
    x = x + gb * _B_ref(h, B_w_gate, B_w_up, B_w_down)
    return x
```

```python
KN = 'adaLN_cond__mha_block_cached__glu_gated_geglu__decode'
class Asm:
    def __init__(self):
        self.lines = []
        self.nlab = 0
    def __call__(self, s):
        for l in s.split('\n'):
            l = l.strip()
            if l: self.lines.append(('' if l.endswith(':') else '    ') + l)
    def label(self, base='L'):
        self.nlab += 1
        return f'{base}_{self.nlab}'
    def text(self): return '\n'.join(self.lines) + '\n'

HEADER_TAIL = '''.amdgcn_target "amdgcn-amd-amdhsa--gfx950"
.text
'''
def kernel_wrap(name, body, vgpr, sgpr=102, accum=None, extra=''):
    if accum is None: accum = min(256, (vgpr + 3) // 4 * 4)
    return f'''.globl {name}
.p2align 8
.type {name},@function
{name}:
{body}
.section .rodata,"a"
.p2align 6
.amdhsa_kernel {name}
  .amdhsa_next_free_vgpr {vgpr}
  .amdhsa_next_free_sgpr {sgpr}
  .amdhsa_accum_offset {accum}
  .amdhsa_group_segment_fixed_size 0
  .amdhsa_kernarg_size 112
  .amdhsa_user_sgpr_count 2
  .amdhsa_user_sgpr_kernarg_segment_ptr 1
  .amdhsa_system_sgpr_workgroup_id_x 1
  .amdhsa_float_denorm_mode_32 3
{extra}.end_amdhsa_kernel
.text
'''
```

```python
import re
RE_V = re.compile(r'^v(\d+)$'); RE_VR = re.compile(r'^v\[(\d+):(\d+)\]$')
RE_S = re.compile(r'^s(\d+)$'); RE_SR = re.compile(r'^s\[(\d+):(\d+)\]$')
def regs(op):
    op = op.strip()
    neg = op.lstrip('-')
    if neg.startswith('abs(') and neg.endswith(')'): neg = neg[4:-1]
    if neg.startswith('|') and neg.endswith('|'): neg = neg[1:-1]
    op = neg
    m = RE_V.match(op)
    if m: return {('v', int(m.group(1)))}
    m = RE_VR.match(op)
    if m: return {('v', i) for i in range(int(m.group(1)), int(m.group(2)) + 1)}
    m = RE_S.match(op)
    if m: return {('s', int(m.group(1)))}
    m = RE_SR.match(op)
    if m: return {('s', i) for i in range(int(m.group(1)), int(m.group(2)) + 1)}
    if op == 'vcc': return {('s', 'vcc')}
    if op in ('vcc_lo', 'vcc_hi'): return {('s', 'vcc')}
    if op == 'exec' or op in ('exec_lo', 'exec_hi'): return {('s', 'exec')}
    if op == 'm0': return {('s', 'm0')}
    return set()
TRANS = ('v_exp_f32', 'v_log_f32', 'v_rcp_f32', 'v_rsq_f32', 'v_sqrt_f32', 'v_sin_f32', 'v_cos_f32')
class I:
    def __init__(self, line):
        self.line = line
        t = line.split(';')[0].strip()
        self.label = t.endswith(':')
        self.empty = (t == '')
        if self.label or self.empty or t.startswith('.'):
            self.kind = 'nop0'; self.mn = ''; self.d = set(); self.s = set(); self.text = t; return
        parts = t.split(None, 1)
        mn = parts[0]; self.mn = mn
        rest = parts[1] if len(parts) > 1 else ''
        ops = []; cur = ''; depth = 0
        for ch in rest:
            if ch in '[(': depth += 1
            if ch in '])': depth -= 1
            if ch == ',' and depth == 0: ops.append(cur.strip()); cur = ''
            else: cur += ch
        if cur.strip(): ops.append(cur.strip())
        mods = ''
        if ops:
            last = ops[-1].split(None, 1)
            ops[-1] = last[0]
            if len(last) > 1: mods = last[1]
        self.ops = ops; self.mods = mods; self.text = t
        self.dpp = ('_dpp' in mn) or ('row_' in mods) or ('quad_perm' in mods) or ('wave_' in mods)
        self.sdwa = '_sdwa' in mn
        R = [regs(o) for o in ops]
        d = set(); s = set()
        self.kind = 'other'
        if mn.startswith('v_mfma'):
            self.kind = 'mfma'; d = R[0]; s = R[1] | R[2] | R[3]; self.srcC = R[3]; self.srcAB = R[1] | R[2]
        elif mn.startswith('v_cmp'):
            self.kind = 'valu'; d = R[0]; s = set().union(*R[1:])
            if mn.startswith('v_cmpx'): d = d | {('s', 'exec')}
        elif mn.startswith('v_readlane') or mn.startswith('v_readfirstlane'):
            self.kind = 'valu'; d = R[0]; s = set().union(*R[1:]); self.rl = True
        elif mn.startswith('v_writelane'):
            self.kind = 'valu'; d = R[0]; s = set().union(*R[1:]) | R[0]; self.wl = True
        elif mn.startswith('v_permlane'):
            self.kind = 'valu'; d = R[0] | R[1]; s = R[0] | R[1]; self.perm = True
        elif mn.startswith('v_'):
            self.kind = 'valu'; d = R[0]; s = set().union(*R[1:]) if len(R) > 1 else set()
            if mn.startswith(('v_fmac', 'v_mac', 'v_dot2c', 'v_pk_fmac')): s = s | R[0]
            if mn.startswith(('v_add_co', 'v_sub_co', 'v_addc_co', 'v_subb_co', 'v_subrev_co', 'v_div_scale')): d = R[0] | R[1]; s = set().union(*R[2:])
            if mn.startswith('v_cndmask') and len(ops) == 3: s = s | {('s', 'vcc')}
            if self.dpp: s = s | R[0]
        elif mn.startswith('buffer_') or mn.startswith('global_'):
            self.kind = 'vmem'
            lds = ' lds' in (' ' + mods) or '_lds_' in mn
            if 'load' in mn and not lds: d = R[0]; s = set().union(*R[1:])
            elif 'atomic' in mn:
                s = set().union(*R)
                if 'sc0' in mods: d = R[0]
                self.store = True; self.sdata = R[0]
            elif 'store' in mn:
                s = set().union(*R); self.store = True; self.sdata = R[0] if mn.startswith('buffer_') else R[1]
            else: s = set().union(*R)
            if lds: s = s | {('s', 'm0')}; self.ldsdma = True
        elif mn.startswith('ds_'):
            self.kind = 'ds'
            if 'read' in mn or 'bpermute' in mn or 'permute' in mn or 'swizzle' in mn or '_rtn' in mn: d = R[0]; s = set().union(*R[1:])
            else: s = set().union(*R)
        elif mn.startswith('s_'):
            self.kind = 'salu'
            if mn in ('s_nop',): self.kind = 'snop'
            elif mn.startswith(('s_cmp', 's_cbranch', 's_branch', 's_waitcnt', 's_barrier', 's_sleep', 's_setprio', 's_endpgm', 's_bitcmp')):
                s = set().union(*R) if R else set()
            else:
                d = R[0] if R else set(); s = set().union(*R[1:]) if len(R) > 1 else set()
                if 'saveexec' in mn: d = d | {('s', 'exec')}; s = s | {('s', 'exec')}
        self.d = d; self.s = s
    def states(self):
        if self.kind == 'nop0': return 0
        if self.kind == 'snop': return int(self.ops[0], 0) + 1
        return 1
def isv(x): return {r for r in x if r[0] == 'v'}
def iss(x): return {r for r in x if r[0] == 's'}
def need(p, c):
    n = 0
    if p.kind == 'valu':
        pv = isv(p.d); ps = iss(p.d)
        if c.kind == 'valu':
            if c.dpp and (pv & c.s): n = max(n, 2)
            if getattr(c, 'perm', False) and (pv & c.s): n = max(n, 2)
            if getattr(c, 'rl', False) and (pv & isv(c.s)): n = max(n, 1)
            if ps & iss(c.s):
                n = max(n, 2)
                if getattr(c, 'rl', False) or getattr(c, 'wl', False): n = max(n, 4)
            if ('s', 'exec') in p.d:
                if c.dpp: n = max(n, 5)
                if getattr(c, 'rl', False) or getattr(c, 'wl', False) or getattr(c, 'perm', False): n = max(n, 4)
            if any(p.mn.startswith(t) for t in TRANS) and (pv & c.s): n = max(n, 1)
            if (p.sdwa or 'op_sel' in p.mods) and (pv & (c.s | c.d)): n = max(n, 1)
        if c.kind == 'mfma':
            if pv & c.s: n = max(n, 2)
            if ('s', 'exec') in p.d: n = max(n, 4)
        if c.kind == 'vmem' and (ps & iss(c.s)): n = max(n, 5)
    if p.kind == 'mfma':
        p4 = '16x16' in p.mn
        raw = 8 if p4 else 12
        if c.kind == 'mfma':
            if p.d & c.srcAB: n = max(n, raw)
            if (p.d & c.srcC) and (p.d != c.srcC): n = max(n, 6 if p4 else 10)
        elif c.kind in ('valu', 'vmem', 'ds'):
            if p.d & (c.s | c.d): n = max(n, raw)
        if c.kind == 'valu' and (p.srcC & c.d): n = max(n, 3 if p4 else 7)
    if p.kind == 'salu':
        if ('s', 'm0') in p.d and (getattr(c, 'ldsdma', False)): n = max(n, 1)
    if p.kind == 'vmem' and getattr(p, 'store', False):
        wide = ('x3' in p.mn or 'x4' in p.mn)
        if wide and (p.sdata & c.d):
            n = max(n, 2 if c.kind == 'valu' else 1)
    return n
def pad(lines, window=24):
    out = []; hist = []
    nins = 0
    for line in lines:
        c = I(line)
        if c.kind == 'nop0':
            out.append(line); continue
        req = 0; dist = 0
        for p in reversed(hist[-window:]):
            k = need(p, c)
            if k > dist: req = max(req, k - dist)
            dist += p.states()
            if dist >= 20: break
        while req > 0:
            k = min(req, 16)
            nop = f'    s_nop {k-1}'
            out.append(nop); hist.append(I(nop)); req -= k; nins += 1
        out.append(line); hist.append(c)
    return out, nins

def check_branches(lines):
    ins = [I(l) for l in lines]
    labels = {}
    for k, c in enumerate(ins):
        if c.label: labels[c.text[:-1]] = k
    msgs = []
    for k, c in enumerate(ins):
        if c.mn.startswith(('s_cbranch', 's_branch')):
            tgt = c.ops[0]
            if tgt not in labels: msgs.append(f'unknown label {tgt}'); continue
            pre = [x for x in ins[max(0, k - 30):k + 1] if x.kind != 'nop0']
            post = []
            for x in ins[labels[tgt]:labels[tgt] + 60]:
                if x.kind != 'nop0': post.append(x)
                if len(post) >= 20: break
            hist = list(pre)
            for cc in post:
                dist = 0
                npost = len(hist) - len(pre)
                for idx in range(len(hist) - 1, -1, -1):
                    p = hist[idx]
                    if idx < len(pre):
                        q = need(p, cc)
                        if q > dist: msgs.append(f'branch {c.text}: {p.text} -> {cc.text} needs {q}, has {dist}')
                    dist += p.states()
                    if dist >= 20: break
                hist.append(cc)
                if cc.mn.startswith(('s_branch', 's_endpgm')): break
    return msgs
```

```python
import sys, struct
from asmlib import *
from hz import pad, check_branches

def f2h(x): return '0x%08x' % struct.unpack('<I', struct.pack('<f', x))[0]
LOG2E = 1.4426950408889634
SCALE = 128 ** -0.5

W_EPOCH = 0x0
W_M01 = 0x1000; W_M34 = 0x3000; W_M2 = 0x5000; W_M5 = 0x6000
W_Q = 0x8000; W_CNT = 0x10000; W_X1 = 0x14000
W_A = 0x20000; W_Y = 0xA0000; W_D = 0xD0000; W_S = 0x200000
W_SIZE = 0x600000
STAMP_OFF = (1 << 30) - (1 << 18)

SC = 0
QV = SC + 12288
HV = QV + 256
PO = HV + 8192
PML = PO + 2048
RED = PML + 64
H2 = RED + 1024
HH = H2 + 1280
FLG = HH + 64
STG = 25600; STG_SZ = 20480
assert FLG + 128 <= STG
LDS_SZ = STG + 4 * STG_SZ

NKU = 64
RK = 12
TMO = 20000

class Gen(Asm):
    def __init__(self, opt):
        super().__init__()
        self.opt = opt
        self.vm = []
    def vmop(self, tag): self.vm.append(tag)
    def vmwait(self, tag):
        idx = max(i for i, t in enumerate(self.vm) if t == tag)
        n = len(self.vm) - 1 - idx
        assert n <= 63
        self(f's_waitcnt vmcnt({n})')
        self.vm = self.vm[len(self.vm) - n:] if n > 0 else []
    def stamp(self, k, reg='v63'):
        if not self.opt.get('stamps'): return
        self(f'''s_memrealtime s[98:99]
        s_waitcnt lgkmcnt(0)
        v_writelane_b32 {reg}, s98, {k}''')
    def stamp_store(self, reg='v63'):
        if not self.opt.get('stamps'): return
        self(f'''s_lshl_b32 s96, s2, 3
        s_add_u32 s96, s96, s3
        s_lshl_b32 s96, s96, 6
        s_add_u32 s96, s96, {STAMP_OFF}
        s_mov_b32 s92, s8
        s_mov_b32 s93, s9
        s_mov_b32 s94, 0x40000000
        s_mov_b32 s95, 0x20000
        v_lshlrev_b32 v62, 2, v0
        s_mov_b64 exec, 0xffff
        buffer_store_dword {reg}, v62, s[92:95], s96 offen
        s_mov_b64 exec, -1''')

def wave_reduce(a, op, v, sdst):
    ins = f'v_{op}_f32_dpp'
    for m in ('row_shr:1', 'row_shr:2', 'row_shr:4', 'row_shr:8'):
        a(f'{ins} {v}, {v}, {v} {m} row_mask:0xf bank_mask:0xf')
    a(f'{ins} {v}, {v}, {v} row_bcast:15 row_mask:0xa bank_mask:0xf')
    a(f'{ins} {v}, {v}, {v} row_bcast:31 row_mask:0xc bank_mask:0xf')
    a(f'v_readlane_b32 {sdst}, {v}, 63')

def lds_wait_flags(a, phase, name, vt, tagreg='s12'):
    lab = a.label('L_FW_' + name); done = a.label('L_FD_' + name)
    a(f'''v_mov_b32 v{vt+4}, {FLG + 16*phase}
    s_mov_b32 s91, {TMO*8}
    {lab}:
    ds_read_b128 v[{vt}:{vt+3}], v{vt+4}
    s_waitcnt lgkmcnt(0)
    v_xor_b32 v{vt}, {tagreg}, v{vt}
    v_bitop3_b32 v{vt}, v{vt}, v{vt+1}, {tagreg} bitop3:0xf6
    v_bitop3_b32 v{vt}, v{vt}, v{vt+2}, {tagreg} bitop3:0xf6
    v_bitop3_b32 v{vt}, v{vt}, v{vt+3}, {tagreg} bitop3:0xf6
    v_cmp_ne_u32 vcc, 0, v{vt}
    s_cbranch_vccz {done}
    s_sub_u32 s91, s91, 1
    s_cmp_lg_u32 s91, 0
    s_cbranch_scc1 {lab}
    {done}:''')

def hsync(a, phase, name):
    a(f'''s_lshl_b32 s91, s3, 2
    s_add_u32 s91, s91, {FLG + 16*phase}
    v_mov_b32 v28, s91
    v_mov_b32 v29, s12
    ds_write_b32 v28, v29''')
    lds_wait_flags(a, phase, name, 20)

def streamer(a):
    o = a.opt
    S = o.get('S', 48); RV = o.get('RV', 4); PW = o.get('PW', 2)
    POOL = 2048 - 32 * S
    assert S % RV == 0 and RV % 2 == 0 and S <= 48 and (S - 2 * RV) % RV == 0
    RING = 64
    def ring(slot, t): r = RING + 16 * slot + 4 * t; return f'v[{r}:{r+3}]'
    D = 12; BQ = 16
    a('L_STREAM:')
    a(f'''
    s_load_dwordx4 s[16:19], s[0:1], 8
    s_load_dwordx2 s[8:9], s[0:1], 104
    s_sub_u32 s29, s3, 4
    v_lshrrev_b32 v6, 4, v0          ; g
    v_and_b32 v7, 3, v0              ; c
    v_lshl_add_u32 v7, v6, 2, v7     ; 4g+c
    v_lshlrev_b32 v7, 4, v7
    v_bfe_u32 v8, v0, 2, 2           ; k4
    v_lshl_add_u32 v1, v8, 8, v7     ; vKoff
    v_lshlrev_b32 v2, 4, v0          ; vVoff
    s_mul_i32 s28, s4, {4*S}
    s_add_u32 s28, s28, s29
    s_lshl_b32 s28, s28, 12
    s_mov_b32 s30, s28
    s_mul_i32 s31, s4, {4*(NKU-S)}
    s_add_u32 s31, s31, s29
    s_add_u32 s31, s31, {32*S}
    s_lshl_b32 s31, s31, 12
    s_lshl_b32 s33, s5, 23
    s_mov_b32 s22, 0x800000
    s_mov_b32 s23, 0x20000
    s_mov_b32 s26, 0x800000
    s_mov_b32 s27, 0x20000
    s_waitcnt lgkmcnt(0)
    s_add_u32 s20, s16, s33
    s_addc_u32 s21, s17, 0
    s_add_u32 s24, s18, s33
    s_addc_u32 s25, s19, 0
    s_load_dword s12, s[8:9], {W_EPOCH}
    ''')
    if o.get('rolewait', True):
        a(f'''s_cmp_ge_u32 s2, 124
        s_cbranch_scc1 L_ST_GO
        s_waitcnt lgkmcnt(0)
        s_mul_i32 s13, s12, 1664525
        s_add_u32 s13, s13, 1013904223''')
        lds_wait_flags(a, 0, 'ST', 8, tagreg='s13')
        a('L_ST_GO:')
    def issueK(u, slot):
        for t in range(4):
            a(f'buffer_load_dwordx4 {ring(slot,t)}, v1, s[20:23], s28 offen offset:{t*1024} nt'); a.vmop(('K', u))
        a('s_add_u32 s28, s28, 16384')
    for u in range(PW): issueK(u, u)
    a(f'''
    s_mov_b32 s10, {W_SIZE}
    s_mov_b32 s11, 0x20000
    v_lshrrev_b32 v6, 2, v0          ; slot16 = l>>2
    v_lshlrev_b32 v4, 3, v6
    s_mul_i32 s34, s29, 3072
    s_add_u32 s34, s34, {SC}
    v_lshl_add_u32 v3, v6, 2, s34
    v_mov_b32 v5, 0xff800000
    ''')
    a.stamp(0)
    for u in range(PW, RK):
        a.vmwait(('K', u - PW)); issueK(u, u)
    a.stamp(1)
    a(f'''
    v_and_b32 v6, 3, v0
    v_cmp_eq_u32 s[32:33], 1, v6
    v_cmp_eq_u32 s[34:35], 2, v6
    v_cmp_eq_u32 s[36:37], 3, v6
    s_mov_b32 s56, 0x11111111
    s_mov_b32 s57, 0x11111111
    s_waitcnt lgkmcnt(0)
    s_mul_i32 s12, s12, 1664525
    s_add_u32 s12, s12, 1013904223
    s_mul_i32 s39, s5, {POOL}
    s_mul_i32 s40, s4, {4*(NKU-S)}
    s_add_u32 s39, s39, s40
    s_add_u32 s39, s39, s29
    s_lshl_b32 s39, s39, 7
    s_add_u32 s39, s39, {W_S}
    v_mov_b32 v53, s12
    s_barrier
    ''')
    a.stamp(2)
    a(f'''
    v_lshrrev_b32 v6, 4, v0
    v_and_b32 v7, 3, v0
    v_lshl_add_u32 v6, v6, 2, v7
    v_lshlrev_b32 v6, 4, v6
    ds_read_b128 v[8:11], v6 offset:{QV}
    v_bfe_u32 v7, v0, 2, 2
    s_waitcnt lgkmcnt(0)
    ''')
    for t in range(4):
        a(f'v_cmp_eq_u32 vcc, {t}, v7')
        for r in range(4):
            a(f'v_cndmask_b32 v{BQ+4*t+r}, 0, v{8+r}, vcc')
    def kstep(slot, issue, N=None, tag=None, donated=None, ldsoff=None):
        if N is not None: a(f's_waitcnt vmcnt({N})')
        else: a.vmwait(tag)
        for t in range(4):
            c = '0' if t == 0 else f'v[{D}:{D+3}]'
            a(f'v_mfma_f32_16x16x32_bf16 v[{D}:{D+3}], {ring(slot,t)}, v[{BQ+4*t}:{BQ+4*t+3}], {c}')
        issue()
        a(f'''
        v_cndmask_b32_e64 v6, v{D}, v{D+1}, s[32:33]
        v_cndmask_b32_e64 v6, v6, v{D+2}, s[34:35]
        v_cndmask_b32_e64 v6, v6, v{D+3}, s[36:37]
        v_add_f32_dpp v6, v6, v6 quad_perm:[1,0,3,2] row_mask:0xf bank_mask:0xf
        v_add_f32_dpp v6, v6, v6 quad_perm:[2,3,0,1] row_mask:0xf bank_mask:0xf
        v_cvt_pk_bf16_f32 v7, v6, v6
        v_lshlrev_b32 v7, 16, v7
        v_mul_f32 v7, {f2h(SCALE)}, v7
        v_cvt_pk_bf16_f32 v7, v7, v7
        v_and_b32 v52, 0xffff0000, v7
        v_max_f32 v5, v5, v52
        ''')
        if donated is None:
            a(f'ds_write_b32 v3, v52 offset:{ldsoff}')
        else:
            a('''s_mov_b64 exec, s[56:57]
            buffer_store_dwordx2 v[52:53], v4, s[8:11], s39 offen sc1
            s_mov_b64 exec, -1
            s_add_u32 s39, s39, 512''')
            a.vmop(('KS', donated))
    NR = S // RK
    a('s_mov_b32 s55, 0\ns_mov_b32 s58, 12')
    a('L_KLOOP:')
    for slot in range(RK):
        def iss(slot=slot):
            a(f's_cmp_eq_u32 s58, {S}\ns_cselect_b32 s28, s31, s28\ns_add_u32 s58, s58, 1')
            for t in range(4):
                a(f'buffer_load_dwordx4 {ring(slot,t)}, v1, s[20:23], s28 offen offset:{t*1024} nt')
            a('s_add_u32 s28, s28, 16384')
        kstep(slot, iss, N=44, ldsoff=slot * 64)
    a(f'''v_add_u32 v3, 768, v3
    s_add_u32 s55, s55, 1
    s_cmp_lt_u32 s55, {NR}
    s_cbranch_scc1 L_KLOOP''')
    i0 = NR * RK
    a.vm = [('K', u) for u in range(i0, i0 + RK) for _ in range(4)]
    a.stamp(3)
    VS0 = 4
    def issueV(v, slot, soff='s30', adv=True):
        for t in range(4):
            a(f'buffer_load_dwordx4 {ring(slot,t)}, v2, s[24:27], {soff} offen offset:{t*1024} nt'); a.vmop(('V', v))
        if adv: a('s_add_u32 s30, s30, 16384')
    for i in range(i0, 64):
        slot = i % RK
        if i + RK < 64:
            def iss(i=i, slot=slot):
                if i + RK == S: a('s_mov_b32 s28, s31')
                issueK(i + RK, slot)
        elif i >= 64 - RV: iss = (lambda i=i: issueV(i - (64 - RV), VS0 + i - (64 - RV)))
        else: iss = (lambda: None)
        if i < S: kstep(slot, iss, tag=('K', i), ldsoff=(i - i0) * 64)
        else: kstep(slot, iss, tag=('K', i), donated=i)
    wave_reduce(a, 'max', 'v5', 's38')
    a.stamp(4)
    MK = 16; B0 = 20; B1 = 24; O = 12
    a(f'''
    v_subrev_u32 v3, {NR*768}, v3
    v_and_b32 v6, 7, v0
    v_and_b32 v7, 1, v6
    v_lshrrev_b32 v6, 1, v6          ; r_sel
    v_cmp_eq_u32 vcc, 1, v7
    v_mov_b32 v8, 0xffff
    v_mov_b32 v9, 0xffff0000
    v_cndmask_b32 v8, v8, v9, vcc
    ''')
    for r in range(4):
        a(f'v_cmp_eq_u32 vcc, {r}, v6\nv_cndmask_b32 v{MK+r}, 0, v8, vcc')
    a(f'''
    v_mov_b32 v{O}, 0
    v_mov_b32 v{O+1}, 0
    v_mov_b32 v{O+2}, 0
    v_mov_b32 v{O+3}, 0
    v_mov_b32 v5, 0                  ; vL
    ds_read_b32 v10, v3
    s_lshl_b32 s40, s5, 8
    s_add_u32 s40, s40, {W_CNT}
    v_mov_b32 v50, s40
    s_mov_b32 s44, s8
    s_mov_b32 s45, s9
    s_mov_b32 s46, {W_SIZE}
    s_mov_b32 s47, 0x20000
    s_mov_b32 s48, s8
    s_mov_b32 s49, s9
    s_mov_b32 s50, {W_SIZE}
    s_mov_b32 s51, 0x20000
    s_mul_i32 s41, s5, {POOL*128}
    s_add_u32 s41, s41, {W_S}
    s_mov_b32 s52, 0
    s_mov_b32 s53, -1
    ''')
    def pv(vs):
        a(f'''
        v_subrev_f32 v6, s38, {vs}
        v_mul_f32 v6, {f2h(LOG2E)}, v6
        v_exp_f32 v6, v6
        ''')
    def andB(B, t):
        for r in range(4):
            a(f'v_and_b32_dpp v{B+r}, v7, v{MK+r} row_newbcast:{4*t} row_mask:0xf bank_mask:0xf')
    def mf(slot, B, t):
        a(f'v_mfma_f32_16x16x32_bf16 v[{O}:{O+3}], {ring(slot,t)}, v[{B}:{B+3}], v[{O}:{O+3}]')
    def pv2():
        a('v_add_f32 v5, v5, v6\nv_cvt_pk_bf16_f32 v7, v6, v6')
        andB(B0, 0); andB(B1, 1)
    def pv3(slot):
        mf(slot, B0, 0); andB(B0, 2); mf(slot, B1, 1); andB(B1, 3); mf(slot, B0, 2); mf(slot, B1, 3)
    def vstep_static(v, slot, cur, nxt, nxt_off, N=None, issue=None):
        a('s_waitcnt lgkmcnt(0)')
        pv(cur)
        if nxt is not None: a(f'ds_read_b32 {nxt}, v3 offset:{nxt_off}')
        pv2()
        if N is not None: a(f's_waitcnt vmcnt({N})')
        else: a.vmwait(('V', v))
        pv3(slot)
        issue()
    TK = 44; GS = 32
    def atomic(k):
        a(f'''s_mov_b64 exec, 1
        v_mov_b32 v{TK+k}, 1
        buffer_atomic_add v{TK+k}, v50, s[48:51], 0 offen sc0
        s_mov_b64 exec, -1'''); a.vmop(('T', k))
    def issue_pool(k, slot, posconst=None):
        if posconst is None: a(f's_add_u32 s58, s52, {RV}')
        else: a(f's_mov_b32 s58, {posconst}')
        a(f'''v_readfirstlane_b32 s54, v{TK+k}
        s_cmp_lt_u32 s54, {POOL}
        s_cselect_b32 s26, s26, 0
        s_cselect_b32 s46, s46, 0
        s_cselect_b32 s50, s50, 0
        s_cselect_b32 s58, -1, s58
        s_min_u32 s53, s53, s58
        s_lshl_b32 s59, s54, 7
        s_add_u32 s{60+k}, s59, s41
        s_add_u32 s59, s54, {32*S}
        s_lshl_b32 s59, s59, 12
        ''')
        atomic(k)
        a(f'buffer_load_dwordx2 v[{GS+2*k}:{GS+2*k+1}], v4, s[44:47], s{60+k} offen sc1'); a.vmop(('V', ('p', k)))
        issueV(('p', k), slot, soff='s59', adv=False)
    pool = o.get('pool', True)
    NV = (RV - 1) * 4
    sim = list(a.vm)
    a('s_mov_b32 s55, 0')
    a('L_VLOOP:')
    for k in range(RV):
        cur, nxt = ('v10', 'v11') if k % 2 == 0 else ('v11', 'v10')
        def iss(k=k):
            for t in range(4):
                a(f'buffer_load_dwordx4 {ring(VS0+k,t)}, v2, s[24:27], s30 offen offset:{t*1024} nt')
            a('s_add_u32 s30, s30, 16384')
        idx = max(i for i, t in enumerate(sim) if t == ('V', k)); assert len(sim) - 1 - idx >= NV
        sim += [('V', k + RV)] * 4
        vstep_static(None, VS0 + k, cur, nxt, (k + 1) * 64, N=NV, issue=iss)
    nvr = (S - 2 * RV) // RV
    a(f'''v_add_u32 v3, {RV*64}, v3
    s_add_u32 s55, s55, 1
    s_cmp_lt_u32 s55, {nvr}
    s_cbranch_scc1 L_VLOOP''')
    v0 = S - 2 * RV
    a.vm = [('V', v) for v in range(v0, v0 + RV) for _ in range(4)]
    a.stamp(5)
    for v in range(v0, v0 + RV):
        k = v - v0
        cur, nxt = ('v10', 'v11') if k % 2 == 0 else ('v11', 'v10')
        def iss(v=v, k=k):
            if pool: atomic(k)
            issueV(v + RV, VS0 + k)
        vstep_static(v, VS0 + k, cur, nxt, (k + 1) * 64, issue=iss)
    for v in range(v0 + RV, S):
        k = v - v0 - RV
        cur, nxt = ('v10', 'v11') if k % 2 == 0 else ('v11', 'v10')
        def iss(v=v, k=k):
            if pool: issue_pool(k, VS0 + k, posconst=k)
        vstep_static(v, VS0 + k, cur, nxt if v < S - 1 else None, (k + RV + 1) * 64, issue=iss)
    a.stamp(6)
    if pool:
        NP = (RV - 1) * 6
        a('L_PLOOP:')
        for k in range(RV):
            slot = VS0 + k
            a(f'''s_waitcnt vmcnt({NP})
            s_cmp_eq_u32 s52, s53
            s_cbranch_scc1 L_VDONE
            v_cmp_ne_u32 vcc, s12, v{GS+2*k+1}
            s_cbranch_vccnz L_RETRY_{k}
            L_RETB_{k}:
            v_cmp_lt_f32 vcc, s38, v{GS+2*k}
            s_cbranch_vccnz L_RESC_{k}
            L_RESB_{k}:''')
            pv(f'v{GS+2*k}'); pv2(); pv3(slot)
            issue_pool(k, slot)
            a('s_add_u32 s52, s52, 1')
        a('s_branch L_PLOOP')
        for k in range(RV):
            a(f'''L_RETRY_{k}:
            s_mov_b32 s59, {TMO}
            L_RETL_{k}:
            buffer_load_dwordx2 v[{GS+2*k}:{GS+2*k+1}], v4, s[8:11], s{60+k} offen sc1
            s_waitcnt vmcnt(0)
            v_cmp_ne_u32 vcc, s12, v{GS+2*k+1}
            s_cbranch_vccz L_RETB_{k}
            s_sub_u32 s59, s59, 1
            s_cmp_lg_u32 s59, 0
            s_cbranch_scc1 L_RETL_{k}
            s_branch L_RETB_{k}
            L_RESC_{k}:
            v_mov_b32 v6, v{GS+2*k}
            s_nop 7''')
            wave_reduce(a, 'max', 'v6', 's59')
            a(f'''v_mov_b32 v6, s38
            v_max_f32 v7, s59, v6
            v_sub_f32 v6, v6, v7
            v_mul_f32 v6, {f2h(LOG2E)}, v6
            v_exp_f32 v6, v6
            v_readfirstlane_b32 s38, v7
            v_mul_f32 v{O}, v{O}, v6
            v_mul_f32 v{O+1}, v{O+1}, v6
            v_mul_f32 v{O+2}, v{O+2}, v6
            v_mul_f32 v{O+3}, v{O+3}, v6
            v_mul_f32 v5, v5, v6
            s_nop 4
            s_branch L_RESB_{k}''')
    a('L_VDONE:')
    a('s_waitcnt vmcnt(0)'); a.vm = []
    a.stamp(7)
    if o.get('stamps') and pool: a('v_writelane_b32 v63, s52, 9')
    wave_reduce(a, 'add', 'v5', 's59')
    a(f'''
    v_lshrrev_b32 v6, 4, v0
    v_lshlrev_b32 v6, 5, v6
    v_and_b32 v7, 7, v0
    v_add_u32 v6, v6, v7
    s_lshl_b32 s40, s29, 9
    s_add_u32 s40, s40, {PO}
    v_lshl_add_u32 v6, v6, 2, s40
    ds_write_b32 v6, v{O}
    ds_write_b32 v6, v{O+1} offset:32
    ds_write_b32 v6, v{O+2} offset:64
    ds_write_b32 v6, v{O+3} offset:96
    v_mov_b32 v8, s38
    v_mov_b32 v9, s59
    v_mul_f32 v9, 0.25, v9
    s_lshl_b32 s40, s29, 3
    s_add_u32 s40, s40, {PML}
    v_mov_b32 v7, s40
    ds_write_b64 v7, v[8:9]
    s_waitcnt lgkmcnt(0)
    s_barrier
    ''')
    a.stamp(8)
    a.stamp_store()
    a('s_endpgm')

FA = 32
FB = 112
GB = 192

def srd(a, d, ptr, size):
    a(f'''s_mov_b32 s{d}, s{ptr}
    s_mov_b32 s{d+1}, s{ptr+1}
    s_mov_b32 s{d+2}, {size}
    s_mov_b32 s{d+3}, 0x20000''')

def tile_dma(a, srdreg, voff, soff_reg, blk_stride, nblk, lds_base_reg, lds_off=0, between=None):
    for k in range(nblk):
        a(f's_add_u32 m0, {lds_base_reg}, {lds_off + k*1024}')
        a(f'buffer_load_dwordx4 {voff}, s[{srdreg}:{srdreg+3}], {soff_reg} offen nt lds')
        if k < nblk - 1:
            if blk_stride: a(f's_add_u32 {soff_reg}, {soff_reg}, {blk_stride}')
            if between: between()

def tr_frag(a, dst, vaddr, off, half_off):
    a(f'ds_read_b64_tr_b16 v[{dst}:{dst+1}], {vaddr} offset:{off}')
    a(f'ds_read_b64_tr_b16 v[{dst+2}:{dst+3}], {vaddr} offset:{off + half_off}')

def gemv(a, fb, nsteps, vaddr, base, D, fa=FA):
    for s in range(nsteps):
        a(f'ds_read_b128 v[{fa+4*s}:{fa+4*s+3}], {vaddr} offset:{base + s*64}')
    for s in range(nsteps):
        a(f's_waitcnt lgkmcnt({min(15, nsteps-1-s)})')
        c = '0' if s == 0 else f'v[{D}:{D+3}]'
        a(f'v_mfma_f32_16x16x32_bf16 v[{D}:{D+3}], v[{fa+4*s}:{fa+4*s+3}], v[{fb+4*s}:{fb+4*s+3}], {c}')

def gemv4(a, fb, vaddr, base, D, fa):
    for s in range(5): a(f'ds_read_b128 v[{fa+4*s}:{fa+4*s+3}], {vaddr} offset:{base + s*64}')
    for s in range(5):
        a(f's_waitcnt lgkmcnt({4-s})')
        for t in range(4):
            c = '0' if s == 0 else f'v[{D+4*t}:{D+4*t+3}]'
            f = fb + (t * 5 + s) * 4
            a(f'v_mfma_f32_16x16x32_bf16 v[{D+4*t}:{D+4*t+3}], v[{fa+4*s}:{fa+4*s+3}], v[{f}:{f+3}], {c}')
    a(f'''v_cmp_eq_u32 s[56:57], 1, v4
    v_cmp_eq_u32 s[58:59], 2, v4
    v_cmp_eq_u32 s[60:61], 3, v4
    v_cndmask_b32_e64 v16, v{D}, v{D+4}, s[56:57]
    v_cndmask_b32_e64 v16, v16, v{D+8}, s[58:59]
    v_cndmask_b32_e64 v16, v16, v{D+12}, s[60:61]''')

def poll(a, name, loads, tags, errcode, sleep=1):
    lab = a.label('L_POLL_' + name); done = a.label('L_POLLD_' + name)
    a(f's_mov_b32 s90, {TMO}')
    a(f'{lab}:')
    for l in loads: a(l)
    a('s_waitcnt vmcnt(0)')
    cur = None
    a('v_mov_b32 v29, 0')
    for reg, mask in tags:
        if mask != cur:
            a(f's_mov_b64 exec, {mask if mask else -1}'); cur = mask
        a(f'v_bitop3_b32 v29, v29, {reg}, s12 bitop3:0xf6')
    if cur is not None: a('s_mov_b64 exec, -1')
    a(f'''v_cmp_ne_u32 vcc, 0, v29
    s_cbranch_vccz {done}
    s_sleep {sleep}
    s_sub_u32 s90, s90, 1
    s_cmp_lg_u32 s90, 0
    s_cbranch_scc1 {lab}
    s_mov_b32 s92, s40
    s_mov_b32 s93, s41
    s_mov_b32 s94, 256
    s_mov_b32 s95, 0x20000
    v_mov_b32 v28, {errcode}
    v_mov_b32 v29, {4*errcode}
    buffer_store_dword v28, v29, s[92:95], 0 offen
    {done}:''')

def rbf(a, dst, src):
    a(f'v_cvt_pk_bf16_f32 {dst}, {src}, {src}')
    a(f'v_and_b32 {dst}, 0xffff0000, {dst}')

def unpack(a, lo, hi, src):
    a(f'v_lshlrev_b32 {lo}, 16, {src}')
    a(f'v_and_b32 {hi}, 0xffff0000, {src}')

def ln_stats(a, X, T):
    a(f'v_add_f32 v{T}, v{X}, v{X+1}')
    for i in range(2, 10): a(f'v_add_f32 v{T}, v{T}, v{X+i}')
    wave_reduce(a, 'add', f'v{T}', 's60')
    a(f'v_mov_b32 v{T}, s60\nv_mul_f32 v{T}, {f2h(1.0/640)}, v{T}')
    a(f'v_sub_f32 v{T+1}, v{X}, v{T}\nv_mul_f32 v{T+2}, v{T+1}, v{T+1}')
    for i in range(1, 10):
        a(f'v_sub_f32 v{T+1}, v{X+i}, v{T}\nv_fmac_f32 v{T+2}, v{T+1}, v{T+1}')
    wave_reduce(a, 'add', f'v{T+2}', 's61')
    a(f'v_mov_b32 v{T+2}, s61\nv_mul_f32 v{T+2}, {f2h(1.0/640)}, v{T+2}')
    rbf(a, f'v{T}', f'v{T}')
    rbf(a, f'v{T+2}', f'v{T+2}')
    a(f'v_add_f32 v{T+2}, {f2h(1e-5)}, v{T+2}')
    rbf(a, f'v{T+2}', f'v{T+2}')
    a(f'v_sqrt_f32 v{T+2}, v{T+2}')
    rbf(a, f'v{T+2}', f'v{T+2}')
    a(f'v_rcp_f32 v{T+3}, v{T+2}')

def ln_apply(a, X, n, T):
    for i in range(n):
        a(f'v_sub_f32 v{X+i}, v{X+i}, v{T}')
        rbf(a, f'v{X+i}', f'v{X+i}')
        a(f'''v_mul_f32 v{T+1}, v{X+i}, v{T+3}
        v_fma_f32 v{X+i}, -v{T+1}, v{T+2}, v{X+i}
        v_fma_f32 v{X+i}, v{X+i}, v{T+3}, v{T+1}''')
        rbf(a, f'v{X+i}', f'v{X+i}')

def modulate(a, X, REC, T, vaddr, off, n, stride=256):
    for i in range(n):
        sp = REC + 4 * i; cp = sp + 2
        unpack(a, f'v{T}', f'v{T+1}', f'v{cp}')
        unpack(a, f'v{T+2}', f'v{T+3}', f'v{sp}')
        for e in range(2):
            a(f'v_add_f32 v{T+e}, 1.0, v{T+e}')
            rbf(a, f'v{T+e}', f'v{T+e}')
            a(f'v_mul_f32 v{T+e}, v{X+2*i+e}, v{T+e}')
            rbf(a, f'v{T+e}', f'v{T+e}')
            a(f'v_add_f32 v{T+e}, v{T+e}, v{T+2+e}')
        a(f'v_cvt_pk_bf16_f32 v{T}, v{T}, v{T+1}')
        a(f'ds_write_b32 {vaddr}, v{T} offset:{off + stride*i}')

def pack_pairs(a, dst, src, tmp):
    a(f'v_mov_b32_dpp {tmp}, {src} quad_perm:[1,1,3,3] row_mask:0xf bank_mask:0xf')
    a(f'v_cvt_pk_bf16_f32 {dst}, {src}, {tmp}')

def sum_groups8(a, regs0, regs1):
    for dst, regs in (('v12', regs0), ('v13', regs1)):
        a(f'v_add_f32 {dst}, {regs[0]}, {regs[1]}')
        for r in regs[2:]: a(f'v_add_f32 {dst}, {dst}, {r}')
    a('''v_add_f32_dpp v12, v12, v12 row_ror:8 row_mask:0xf bank_mask:0xf
    v_add_f32_dpp v13, v13, v13 row_ror:8 row_mask:0xf bank_mask:0xf''')
    for sw in ('v_permlane16_swap_b32', 'v_permlane32_swap_b32'):
        a(f'''v_mov_b32 v14, v12
        v_mov_b32 v15, v13
        {sw} v12, v14
        {sw} v13, v15
        v_add_f32 v12, v12, v14
        v_add_f32 v13, v13, v15''')

def helper(a):
    o = a.opt
    st = lambda k: a.stamp(k, 'v31')
    a('''
    s_load_dwordx16 s[16:31], s[0:1], 0
    s_load_dwordx8 s[32:39], s[0:1], 64
    s_load_dwordx4 s[40:43], s[0:1], 96
    s_setprio 1
    v_mov_b32 v31, 0
    ''')
    a(f'''
    v_lshrrev_b32 v4, 4, v0          ; g
    v_bfe_u32 v5, v0, 2, 2           ; r4
    v_and_b32 v6, 3, v0              ; c
    v_lshl_add_u32 v7, v4, 3, v5     ; 8g + r4
    s_mul_i32 s52, s3, {STG_SZ}
    s_add_u32 s52, s52, {STG}
    s_lshl_b32 s53, s3, 11
    s_add_u32 s53, s53, {HV}
    v_lshl_add_u32 v2, v4, 4, s53
    v_lshl_add_u32 v3, v0, 2, s53
    v_lshrrev_b32 v8, 3, v0
    v_and_b32 v9, 7, v0
    v_lshlrev_b32 v9, 4, v9          ; (lane&7)*16
    v_lshlrev_b32 v1, 7, v7
    v_lshl_add_u32 v1, v6, 3, v1
    v_add_u32 v1, s52, v1
    s_waitcnt lgkmcnt(0)
    s_mov_b32 s8, s42
    s_mov_b32 s9, s43
    s_mov_b32 s10, {W_SIZE}
    s_mov_b32 s11, 0x20000
    s_load_dword s12, s[42:43], {W_EPOCH}
    s_cmp_lt_u32 s2, 64
    s_cbranch_scc1 L_PRE_Q
    s_cmp_lt_u32 s2, 124
    s_cbranch_scc1 L_PRE_M
    s_branch L_PRE_NONE
    ''')
    TAG = '''s_waitcnt lgkmcnt(0)
    s_mul_i32 s12, s12, 1664525
    s_add_u32 s12, s12, 1013904223
    v_mov_b32 v27, s12'''
    def ksplit_dma(ptr, size, stride, Lreg):
        srd(a, 44, ptr, size)
        a(f'''v_mul_u32_u24 v10, {stride}, v8
        v_add_u32 v10, v10, v9
        s_mul_i32 s57, s3, {160*stride}
        s_lshl_b32 s58, {Lreg}, 7
        s_add_u32 s57, s57, s58''')
        tile_dma(a, 44, 'v10', 's57', 8 * stride, 20, 's52')
    def ksplit_frags():
        for t in range(4):
            for s in range(5):
                tr_frag(a, FB + (t * 5 + s) * 4, 'v1', s * 4096 + t * 32, 512)
    def reduce4(phase, name):
        a(f'''s_lshl_b32 s56, s3, 8
        v_lshl_add_u32 v17, v0, 2, s56
        ds_write_b32 v17, v16 offset:{RED}
        s_waitcnt lgkmcnt(0)''')
        hsync(a, phase, name)
        a(f'''v_lshlrev_b32 v17, 2, v0
        ds_read_b32 v16, v17 offset:{RED}
        ds_read_b32 v18, v17 offset:{RED+256}
        ds_read_b32 v19, v17 offset:{RED+512}
        ds_read_b32 v20, v17 offset:{RED+768}
        s_waitcnt lgkmcnt(0)
        v_add_f32 v16, v16, v18
        v_add_f32 v19, v19, v20
        v_add_f32 v16, v16, v19''')
    a('L_PRE_M:')
    a('s_sub_u32 s54, s2, 64')
    srd(a, 48, 34, 1280)
    a(f'''s_mul_i32 s56, s3, 320
    v_lshlrev_b32 v11, 2, v0
    buffer_load_dword v12, v11, s[48:51], s56 offen
    s_mov_b64 exec, 0xffff
    buffer_load_dword v13, v11, s[48:51], s56 offen offset:256
    s_mov_b64 exec, -1''')
    ksplit_dma(36, 640 * 3840 * 2, 7680, 's54')
    a(TAG)
    st(0)
    a('s_waitcnt vmcnt(20)')
    for i in range(2):
        unpack(a, 'v20', 'v21', f'v{12+i}')
        for e in ('v20', 'v21'):
            a(f'''v_mul_f32 v22, {f2h(-LOG2E)}, {e}
            v_min_f32 v22, {f2h(126.0)}, v22
            v_exp_f32 v22, v22
            v_add_f32 v22, 1.0, v22
            v_rcp_f32 v23, v22
            v_mul_f32 v24, {e}, v23
            v_fma_f32 v25, -v24, v22, {e}
            v_fma_f32 {e}, v25, v23, v24''')
        a(f'v_cvt_pk_bf16_f32 v20, v20, v21')
        a(f'ds_write_b32 v3, v20 offset:{256*i}')
    a('s_waitcnt vmcnt(0)')
    a(f'''s_lshl_b32 s91, s3, 2
    s_add_u32 s91, s91, {FLG}
    v_mov_b32 v28, s91
    ds_write_b32 v28, v27''')
    st(1)
    ksplit_frags()
    a('s_waitcnt lgkmcnt(0)')
    gemv4(a, FB, 'v2', 0, GB, FA)
    reduce4(1, 'M')
    a(f'''s_cmp_lg_u32 s3, 0
    s_cbranch_scc1 L_PRE_QG
    s_mul_i32 s58, s54, 26
    s_lshr_b32 s58, s58, 8
    s_mul_i32 s59, s58, 10
    s_sub_u32 s59, s54, s59
    s_lshl_b32 s59, s59, 5           ; p0 = (Lm%10)*32
    s_mov_b32 s60, {W_M01}
    s_mov_b32 s61, 4
    s_cmp_eq_u32 s58, 1
    s_cselect_b32 s60, {W_M01+8}, s60
    s_cmp_eq_u32 s58, 2
    s_cselect_b32 s60, {W_M2}, s60
    s_cselect_b32 s61, 3, s61
    s_cmp_eq_u32 s58, 3
    s_cselect_b32 s60, {W_M34}, s60
    s_cmp_eq_u32 s58, 4
    s_cselect_b32 s60, {W_M34+8}, s60
    s_cmp_eq_u32 s58, 5
    s_cselect_b32 s60, {W_M5}, s60
    s_cselect_b32 s61, 3, s61
    s_lshl_b32 s59, s59, s61
    s_add_u32 s60, s60, s59
    v_lshrrev_b32 v21, 1, v0
    v_lshlrev_b32 v21, s61, v21
    ''')
    pack_pairs(a, 'v26', 'v16', 'v20')
    a('''s_mov_b32 s56, 0x55555555
    s_mov_b32 s57, 0x55555555
    s_mov_b64 exec, s[56:57]
    buffer_store_dwordx2 v[26:27], v21, s[8:11], s60 offen sc1
    s_mov_b64 exec, -1''')
    st(2)
    a('s_branch L_PRE_QG')
    a('L_PRE_Q:')
    srd(a, 48, 16, 1280)
    a('v_lshlrev_b32 v11, 2, v0')
    for i in range(5): a(f'buffer_load_dword v{12+i}, v11, s[48:51], 0 offen offset:{256*i}')
    a(f'''s_mul_i32 s56, s3, 320
    buffer_load_dword v18, v11, s[48:51], s56 offen
    v_mov_b32 v19, 0
    s_mov_b64 exec, 0xffff
    buffer_load_dword v19, v11, s[48:51], s56 offen offset:256
    s_mov_b64 exec, -1''')
    ksplit_dma(22, 640 * 4096 * 2, 8192, 's2')
    a(TAG)
    st(0)
    a(f'''
    s_and_b32 s58, s2, 1
    s_or_b32 s58, s58, s3
    s_cmp_lg_u32 s58, 0
    s_cbranch_scc1 L_Q_NOZ
    s_lshr_b32 s58, s2, 1
    s_lshl_b32 s58, s58, 8
    s_add_u32 s58, s58, {W_CNT}
    v_mov_b32 v20, 0
    s_mov_b64 exec, 1
    buffer_store_dword v20, v20, s[8:11], s58 offen sc1
    s_mov_b64 exec, -1
    L_Q_NOZ:
    s_waitcnt vmcnt(20)
    ''')
    X = 40
    for i in range(5): unpack(a, f'v{X+2*i}', f'v{X+2*i+1}', f'v{12+i}')
    ln_stats(a, X, 20)
    unpack(a, f'v{X}', f'v{X+1}', 'v18'); unpack(a, f'v{X+2}', f'v{X+3}', 'v19')
    ln_apply(a, X, 4, 20)
    a('s_waitcnt vmcnt(0)')
    a(f'''s_lshl_b32 s91, s3, 2
    s_add_u32 s91, s91, {FLG}
    v_mov_b32 v28, s91
    ds_write_b32 v28, v27''')
    st(1)
    ksplit_frags()
    a(f'''v_lshlrev_b32 v11, 4, v0
    s_mul_i32 s62, s3, 1280
    s_add_u32 s62, s62, {W_M01}''')
    loads = [f'buffer_load_dwordx4 v[{GB}:{GB+3}], v11, s[8:11], s62 offen sc1',
             's_mov_b64 exec, 0xffff',
             f'buffer_load_dwordx4 v[{GB+4}:{GB+7}], v11, s[8:11], s62 offen offset:1024 sc1',
             's_mov_b64 exec, -1']
    a(f'v_mov_b32 v{GB+4}, 0\nv_mov_b32 v{GB+6}, 0')
    poll(a, 'M', loads, [(f'v{GB+1}', None), (f'v{GB+3}', None), (f'v{GB+5}', '0xffff'), (f'v{GB+7}', '0xffff')], 1)
    st(2)
    modulate(a, X, GB, 20, 'v3', 0, 2)
    a('s_waitcnt lgkmcnt(0)')
    gemv4(a, FB, 'v2', 0, GB + 16, FA)
    reduce4(1, 'Q')
    a(f'''s_cmp_lg_u32 s3, 0
    s_cbranch_scc1 L_PRE_QG
    s_lshl_b32 s60, s2, 8
    s_add_u32 s60, s60, {W_Q}
    v_lshrrev_b32 v21, 1, v0
    v_lshlrev_b32 v21, 3, v21
    ''')
    pack_pairs(a, 'v26', 'v16', 'v20')
    a('''s_mov_b32 s56, 0x55555555
    s_mov_b32 s57, 0x55555555
    s_mov_b64 exec, s[56:57]
    buffer_store_dwordx2 v[26:27], v21, s[8:11], s60 offen sc1
    s_mov_b64 exec, -1''')
    st(3)
    a('s_branch L_PRE_QG')
    a('L_PRE_NONE:')
    if o.get('pretouch', True):
        a('''
        s_cmp_lg_u32 s3, 2
        s_cbranch_scc1 L_PRE_NT
        s_cmp_ge_u32 s2, 140
        s_cbranch_scc1 L_PRE_NT
        s_getpc_b64 s[44:45]
        L_PC:
        s_sub_u32 s44, s44, L_PC-KSTART
        s_subb_u32 s45, s45, 0
        s_mov_b32 s46, KEND-KSTART
        s_mov_b32 s47, 0x20000
        v_lshlrev_b32 v11, 4, v0
        s_mov_b32 s56, 0
        L_PT:
        buffer_load_dwordx4 v[12:15], v11, s[44:47], s56 offen
        s_add_u32 s56, s56, 1024
        s_cmp_lt_u32 s56, KEND-KSTART
        s_cbranch_scc1 L_PT
        s_waitcnt vmcnt(0)
        L_PRE_NT:
        ''')
    a(TAG)
    a('L_PRE_QG:')
    a(f'''s_cmp_lg_u32 s3, 1
    s_cbranch_scc1 L_H_BAR1
    s_lshl_b32 s62, s5, 9
    s_add_u32 s62, s62, {W_Q}
    v_lshlrev_b32 v11, 3, v0
    ''')
    poll(a, 'Q', [f'buffer_load_dwordx2 v[{GB}:{GB+1}], v11, s[8:11], s62 offen sc1'], [(f'v{GB+1}', None)], 2, sleep=2)
    a(f'''v_lshlrev_b32 v11, 2, v0
    ds_write_b32 v11, v{GB} offset:{QV}
    s_waitcnt lgkmcnt(0)''')
    st(4)
    a('L_H_BAR1:')
    a('s_barrier')
    st(5)
    a(f'''
    s_mov_b32 s64, 0
    s_mov_b32 s66, 0
    s_mov_b32 s63, 0
    s_cmp_lt_u32 s5, 16
    s_cbranch_scc1 L_ROLE_A
    s_sub_u32 s56, s5, 16
    s_lshr_b32 s57, s56, 1
    s_lshl_b32 s57, s57, 2
    s_lshr_b32 s58, s4, 1
    s_add_u32 s57, s57, s58          ; L = ((j-16)>>1)*4 + (xcd>>1)
    s_and_b32 s59, s56, 1
    s_lshl_b32 s65, s57, 1
    s_add_u32 s65, s65, s59
    s_cmp_lt_u32 s57, 27
    s_cselect_b32 s70, 1, 0
    s_and_b32 s59, s4, 1
    s_cmp_eq_u32 s59, 0
    s_cselect_b32 s64, s70, 0        ; isF
    s_lshl_b32 s57, s56, 2
    s_add_u32 s67, s57, s58          ; oc
    s_cmp_lt_u32 s67, 40
    s_cselect_b32 s66, s59, 0
    s_branch L_ROLE_B
    L_ROLE_A:
    s_mov_b32 s70, 0
    L_ROLE_B:
    s_mov_b32 s71, s4
    s_cmp_eq_u32 s3, 0
    s_cbranch_scc0 L_ROLE_C
    s_xor_b32 s63, s64, 1
    s_branch L_ROLE_D
    L_ROLE_C:
    s_cmp_eq_u32 s3, 2
    s_cbranch_scc0 L_ROLE_D
    s_and_b32 s63, s70, s4
    s_and_b32 s63, s63, 1
    s_sub_u32 s71, s4, 1
    L_ROLE_D:
    s_lshr_b32 s68, s71, 1
    s_lshr_b32 s56, s5, 2
    s_lshl_b32 s56, s56, 2
    s_add_u32 s68, s68, s56          ; h'
    s_and_b32 s69, s71, 1
    s_lshl_b32 s69, s69, 2
    s_and_b32 s56, s5, 3
    s_add_u32 s69, s69, s56          ; s'
    s_cmp_eq_u32 s63, 0
    s_cbranch_scc1 L_SH_NOWO
    ''')
    a(f'''
    v_mul_u32_u24 v12, 205, v0
    v_lshrrev_b32 v12, 11, v12       ; row0
    v_mul_u32_u24 v13, 10, v12
    v_sub_u32 v13, v0, v13           ; ch
    v_mul_u32_u24 v10, 1280, v12
    v_lshl_add_u32 v10, v13, 4, v10
    ''')
    srd(a, 44, 24, 4096 * 640 * 2)
    a(f'''s_mul_i32 s57, s68, {128*1280}
    s_mul_i32 s58, s69, 160
    s_add_u32 s57, s57, s58''')
    def step_idx():
        a(f'''v_add_u32 v13, 4, v13
        v_add_u32 v10, {6*1280+64}, v10
        v_cmp_le_u32 vcc, 10, v13
        v_subrev_u32 v14, 10, v13
        v_add_u32 v15, {1280-160}, v10
        v_cndmask_b32 v13, v13, v14, vcc
        v_cndmask_b32 v10, v10, v15, vcc''')
    tile_dma(a, 44, 'v10', 's57', 0, 20, 's52', between=step_idx)
    a(f'''v_mul_u32_u24 v12, 160, v7
    v_lshl_add_u32 v12, v6, 3, v12
    v_add_u32 v12, s52, v12
    s_waitcnt vmcnt(0)''')
    for t in range(5):
        for c in range(4):
            tr_frag(a, FA + 16 * t + 4 * c, 'v12', c * 5120 + t * 32, 640)
    a('s_waitcnt lgkmcnt(0)')
    a('L_SH_NOWO:')
    a(f'''
    s_cmp_eq_u32 s64, 0
    s_cbranch_scc1 L_SH_NOF
    v_lshrrev_b32 v12, 2, v0
    v_mul_u32_u24 v10, 3456, v12
    v_lshl_add_u32 v10, v6, 4, v10
    s_mul_i32 s56, s3, {160*3456}
    s_lshl_b32 s57, s65, 6
    s_add_u32 s56, s56, s57
    s_mul_i32 s59, s3, 10240
    s_add_u32 s59, s59, {STG}
    ''')
    srd(a, 44, 28, 640 * 1728 * 2)
    srd(a, 48, 30, 640 * 1728 * 2)
    a('s_mov_b32 s57, s56')
    tile_dma(a, 44, 'v10', 's57', 16 * 3456, 10, 's59', lds_off=0)
    a('s_mov_b32 s57, s56')
    tile_dma(a, 48, 'v10', 's57', 16 * 3456, 10, 's59', lds_off=40960)
    a(f'''
    v_lshlrev_b32 v12, 6, v7
    v_and_b32 v13, 1, v6
    v_lshl_add_u32 v12, v13, 3, v12
    v_lshrrev_b32 v13, 1, v6
    v_mul_u32_u24 v13, 40960, v13
    s_lshl_b32 s56, s3, 4
    s_add_u32 s56, s56, {STG}
    v_add3_u32 v12, v12, v13, s56
    s_waitcnt vmcnt(0)
    ''')
    hsync(a, 2, 'F1')
    for s_ in range(20): tr_frag(a, FB + 4 * s_, 'v12', s_ * 2048, 256)
    a('s_waitcnt lgkmcnt(0)')
    hsync(a, 3, 'F2')
    srd(a, 44, 32, 1728 * 640 * 2)
    a(f'''v_lshlrev_b32 v10, 4, v0
    s_mul_i32 s57, s65, 40960
    s_mul_i32 s58, s3, 10240
    s_add_u32 s57, s57, s58''')
    tile_dma(a, 44, 'v10', 's57', 1024, 10, 's59')
    a(f'''v_mul_u32_u24 v12, 1280, v7
    v_lshl_add_u32 v12, v6, 3, v12
    s_mul_i32 s56, s3, 320
    s_add_u32 s56, s56, {STG}
    v_add_u32 v12, s56, v12
    s_waitcnt vmcnt(0)''')
    hsync(a, 4, 'F3')
    for i in range(10): tr_frag(a, FA + 4 * i, 'v12', i * 32, 5120)
    a('s_waitcnt lgkmcnt(0)')
    RS = GB + 24
    a(f'''s_cmp_lg_u32 s3, 1
    s_cbranch_scc1 L_SH_NOF
    v_lshlrev_b32 v11, 4, v0''')
    loads = [f'buffer_load_dwordx4 v[{RS+4*i}:{RS+4*i+3}], v11, s[8:11], s62 offen offset:{1024*(i%4)} sc1' for i in range(5)]
    loads.insert(4, f's_mov_b32 s62, {W_M34+4096}'); loads.insert(0, f's_mov_b32 s62, {W_M34}')
    tags = []
    for i in range(5): tags += [(f'v{RS+4*i+1}', None), (f'v{RS+4*i+3}', None)]
    poll(a, 'SB', loads, tags, 3)
    a('L_SH_NOF:')
    XO = GB + 44
    a(f'''
    s_cmp_eq_u32 s66, 0
    s_cbranch_scc1 L_SH_NOO
    s_cmp_lg_u32 s3, 1
    s_cbranch_scc1 L_SH_NOO
    v_and_b32 v11, 7, v0
    v_lshlrev_b32 v12, 2, v11
    s_lshl_b32 s56, s67, 5''')
    srd(a, 44, 16, 1280)
    a(f'''buffer_load_dword v{XO}, v12, s[44:47], s56 offen
    v_lshlrev_b32 v12, 3, v11
    s_lshl_b32 s56, s67, 6
    s_add_u32 s62, s56, {W_M2}
    s_add_u32 s61, s56, {W_M5}''')
    poll(a, 'GA', [f'buffer_load_dwordx2 v[{XO+2}:{XO+3}], v12, s[8:11], s62 offen sc1',
                   f'buffer_load_dwordx2 v[{XO+4}:{XO+5}], v12, s[8:11], s61 offen sc1'],
         [(f'v{XO+3}', None), (f'v{XO+5}', None)], 4)
    a('L_SH_NOO:')
    st(6)
    a('s_barrier')
    st(7)
    a('''s_cmp_lg_u32 s3, 0
    s_cbranch_scc1 L_T_NOCOMB''')
    a(f'''
    v_lshlrev_b32 v10, 3, v0
    ds_read_b64 v[{GB}:{GB+1}], v10 offset:{PO}
    ds_read_b64 v[{GB+2}:{GB+3}], v10 offset:{PO+512}
    ds_read_b64 v[{GB+4}:{GB+5}], v10 offset:{PO+1024}
    ds_read_b64 v[{GB+6}:{GB+7}], v10 offset:{PO+1536}
    v_mov_b32 v11, {PML}
    ds_read_b128 v[12:15], v11
    ds_read_b128 v[16:19], v11 offset:16
    s_mov_b32 s72, {f2h(LOG2E)}
    s_lshl_b32 s56, s5, 3
    s_add_u32 s56, s56, s4           ; h*8+s
    s_lshl_b32 s56, s56, 11
    s_add_u32 s56, s56, {W_A}
    v_lshlrev_b32 v10, 4, v0
    v_mov_b32 v25, s12
    v_mov_b32 v11, 0
    s_waitcnt lgkmcnt(0)
    v_max_f32 v20, v12, v14
    v_max3_f32 v20, v20, v16, v18
    v_sub_f32 v12, v12, v20
    v_sub_f32 v14, v14, v20
    v_sub_f32 v16, v16, v20
    v_sub_f32 v18, v18, v20
    v_mul_f32 v12, {f2h(LOG2E)}, v12
    v_mul_f32 v14, {f2h(LOG2E)}, v14
    v_mul_f32 v16, {f2h(LOG2E)}, v16
    v_mul_f32 v18, {f2h(LOG2E)}, v18
    v_exp_f32 v12, v12
    v_exp_f32 v14, v14
    v_exp_f32 v16, v16
    v_exp_f32 v18, v18
    v_mul_f32 v21, v12, v13
    v_fmac_f32 v21, v14, v15
    v_fmac_f32 v21, v16, v17
    v_fmac_f32 v21, v18, v19
    v_rcp_f32 v22, v21
    v_log_f32 v23, v21
    v_mul_f32 v24, v12, v{GB}
    v_mul_f32 v26, v12, v{GB+1}
    v_fmac_f32 v24, v14, v{GB+2}
    v_fmac_f32 v26, v14, v{GB+3}
    v_fmac_f32 v24, v16, v{GB+4}
    v_fmac_f32 v26, v16, v{GB+5}
    v_fmac_f32 v24, v18, v{GB+6}
    v_fmac_f32 v26, v18, v{GB+7}
    v_mul_f32 v24, v24, v22
    v_mul_f32 v26, v26, v22
    v_fma_f32 v20, v20, s72, v23
    v_mov_b32 v21, s12
    buffer_store_dwordx4 v[24:27], v10, s[8:11], s56 offen sc1
    s_mov_b64 exec, 1
    buffer_store_dwordx2 v[20:21], v11, s[8:11], s56 offen offset:1024 sc1
    s_mov_b64 exec, -1
    ''')
    st(8)
    a('L_T_NOCOMB:')
    a('''s_cmp_eq_u32 s63, 0
    s_cbranch_scc1 L_T_NOWO''')
    a(f'''
    s_lshl_b32 s56, s68, 14
    s_add_u32 s56, s56, {W_A}
    v_lshlrev_b32 v10, 4, v0
    v_and_b32 v11, 7, v0
    v_lshlrev_b32 v11, 11, v11
    ''')
    loads = []
    for s_ in range(8):
        loads.append(f's_add_u32 s62, s56, {s_*2048}')
        loads.append(f'buffer_load_dwordx4 v[{GB+4*s_}:{GB+4*s_+3}], v10, s[8:11], s62 offen sc1')
    loads.append(f'buffer_load_dwordx2 v[{GB+32}:{GB+33}], v11, s[8:11], s56 offen offset:1024 sc1')
    tags = []
    for s_ in range(8): tags += [(f'v{GB+4*s_+1}', None), (f'v{GB+4*s_+3}', None)]
    tags.append((f'v{GB+33}', None))
    poll(a, 'A', loads, tags, 5)
    st(9)
    L = GB + 32
    a(f'v_mov_b32 v12, v{L}')
    for m in ('row_ror:1', 'row_ror:2', 'row_ror:4'):
        a(f'v_max_f32_dpp v12, v12, v12 {m} row_mask:0xf bank_mask:0xf')
    a(f'v_sub_f32 v12, v{L}, v12\nv_exp_f32 v12, v12\nv_mov_b32 v13, v12')
    for m in ('row_ror:1', 'row_ror:2', 'row_ror:4'):
        a(f'v_add_f32_dpp v13, v13, v13 {m} row_mask:0xf bank_mask:0xf')
    a('v_rcp_f32 v13, v13\nv_mul_f32 v12, v12, v13')
    a('v_mov_b32 v14, 0\nv_mov_b32 v15, 0')
    for s_ in range(8):
        a(f'v_fmac_f32_dpp v14, v12, v{GB+4*s_} row_newbcast:{s_} row_mask:0xf bank_mask:0xf')
        a(f'v_fmac_f32_dpp v15, v12, v{GB+4*s_+2} row_newbcast:{s_} row_mask:0xf bank_mask:0xf')
    a(f'''v_cvt_pk_bf16_f32 v14, v14, v15
    ds_write_b32 v3, v14
    s_waitcnt lgkmcnt(0)''')
    AF = GB
    for c in range(4): a(f'ds_read_b128 v[{AF+4*c}:{AF+4*c+3}], v2 offset:{64*c}')
    DY = GB + 16
    a(f'''v_cmp_eq_u32 s[56:57], 1, v4
    v_cmp_eq_u32 s[58:59], 2, v4
    v_cmp_eq_u32 s[60:61], 3, v4
    v_mov_b32 v25, s12
    s_mul_i32 s62, s69, 5
    s_lshl_b32 s62, s62, 12          ; (5 s')*4096
    s_lshl_b32 s73, s68, 7
    s_add_u32 s62, s62, s73
    s_add_u32 s62, s62, {W_Y}
    s_add_u32 s73, s62, 16384
    v_and_b32 v11, 15, v0
    v_lshlrev_b32 v11, 3, v11
    v_lshl_add_u32 v12, v4, 12, v11''')
    for c in range(4):
        a(f's_waitcnt lgkmcnt({3-c})')
        for t in range(5):
            cc = '0' if c == 0 else f'v[{DY+4*t}:{DY+4*t+3}]'
            a(f'v_mfma_f32_16x16x32_bf16 v[{DY+4*t}:{DY+4*t+3}], v[{AF+4*c}:{AF+4*c+3}], v[{FA+16*t+4*c}:{FA+16*t+4*c+3}], {cc}')
    a(f'''
    v_cndmask_b32_e64 v24, v{DY}, v{DY+4}, s[56:57]
    v_cndmask_b32_e64 v24, v24, v{DY+8}, s[58:59]
    v_cndmask_b32_e64 v24, v24, v{DY+12}, s[60:61]
    v_mov_b32 v26, v{DY+16}
    buffer_store_dwordx2 v[24:25], v12, s[8:11], s62 offen sc1
    s_mov_b64 exec, 0xffff
    buffer_store_dwordx2 v[26:27], v11, s[8:11], s73 offen sc1
    s_mov_b64 exec, -1
    ''')
    st(10)
    a('L_T_NOWO:')
    a('''s_cmp_eq_u32 s66, 0
    s_cbranch_scc1 L_T_NOOWN
    s_cmp_lg_u32 s3, 1
    s_cbranch_scc1 L_T_END''')
    a(f'''s_lshl_b32 s62, s67, 12
    s_add_u32 s62, s62, {W_Y}
    v_lshlrev_b32 v10, 4, v0''')
    loads = [f'buffer_load_dwordx4 v[{GB+4*i}:{GB+4*i+3}], v10, s[8:11], s62 offen offset:{1024*i} sc1' for i in range(4)]
    tags = []
    for i in range(4): tags += [(f'v{GB+4*i+1}', None), (f'v{GB+4*i+3}', None)]
    unpack(a, 'v16', 'v17', f'v{XO+2}')
    unpack(a, 'v18', 'v19', f'v{XO}')
    poll(a, 'Y', loads, tags, 6)
    st(8)
    sum_groups8(a, [f'v{GB+4*i}' for i in range(4)], [f'v{GB+4*i+2}' for i in range(4)])
    X1 = GB + 52
    for e in range(2):
        rbf(a, f'v{12+e}', f'v{12+e}')
        a(f'v_mul_f32 v{12+e}, v{12+e}, v{16+e}')
        rbf(a, f'v{12+e}', f'v{12+e}')
        a(f'v_add_f32 v{12+e}, v{12+e}, v{18+e}')
        rbf(a, f'v{X1+e}', f'v{12+e}')
    a(f'''v_cvt_pk_bf16_f32 v26, v{X1}, v{X1+1}
    s_lshl_b32 s62, s67, 6
    s_add_u32 s62, s62, {W_X1}
    v_lshlrev_b32 v11, 3, v0
    s_mov_b64 exec, 0xff
    buffer_store_dwordx2 v[26:27], v11, s[8:11], s62 offen sc1
    s_mov_b64 exec, -1''')
    st(9)
    a(f'''s_mul_i32 s62, s67, {54*128}
    s_add_u32 s62, s62, {W_D}
    s_add_u32 s61, s62, 4096
    s_mov_b32 s74, -1
    s_mov_b32 s75, 0xffff
    v_mov_b32 v{GB+24}, 0
    v_mov_b32 v{GB+26}, 0''')
    unpack(a, 'v16', 'v17', f'v{XO+4}')
    loads = [f'buffer_load_dwordx4 v[{GB+4*i}:{GB+4*i+3}], v10, s[8:11], {"s62" if i < 4 else "s61"} offen offset:{1024*(i%4)} sc1' for i in range(6)]
    loads += ['s_mov_b64 exec, s[74:75]', f'buffer_load_dwordx4 v[{GB+24}:{GB+27}], v10, s[8:11], s61 offen offset:2048 sc1', 's_mov_b64 exec, -1']
    tags = []
    for i in range(6): tags += [(f'v{GB+4*i+1}', None), (f'v{GB+4*i+3}', None)]
    tags += [(f'v{GB+25}', 's[74:75]'), (f'v{GB+27}', 's[74:75]')]
    srd(a, 44, 38, 1280)
    poll(a, 'D', loads, tags, 8)
    st(11)
    sum_groups8(a, [f'v{GB+4*i}' for i in range(7)], [f'v{GB+4*i+2}' for i in range(7)])
    for e in range(2):
        rbf(a, f'v{12+e}', f'v{12+e}')
        a(f'v_mul_f32 v{12+e}, v{12+e}, v{16+e}')
        rbf(a, f'v{12+e}', f'v{12+e}')
        a(f'v_add_f32 v{12+e}, v{12+e}, v{X1+e}')
    a(f'''v_cvt_pk_bf16_f32 v12, v12, v13
    v_lshlrev_b32 v11, 2, v0
    s_lshl_b32 s56, s67, 5
    s_mov_b64 exec, 0xff
    buffer_store_dword v12, v11, s[44:47], s56 offen
    s_mov_b64 exec, -1
    s_cmp_lg_u32 s67, 0
    s_cbranch_scc1 L_T_END
    v_mov_b32 v12, s12
    v_mov_b32 v11, 0
    s_mov_b64 exec, 1
    buffer_store_dword v12, v11, s[8:11], 0 offen sc1
    s_mov_b64 exec, -1
    s_branch L_T_END''')
    a('L_T_NOOWN:')
    a('''s_cmp_eq_u32 s64, 0
    s_cbranch_scc1 L_T_END
    s_cmp_lg_u32 s3, 1
    s_cbranch_scc1 L_T_FBAR''')
    a(f'v_lshlrev_b32 v11, 3, v0\ns_mov_b32 s62, {W_X1}')
    loads = [f'buffer_load_dwordx2 v[{GB+2*i}:{GB+2*i+1}], v11, s[8:11], s62 offen offset:{512*i} sc1' for i in range(5)]
    poll(a, 'X1', loads, [(f'v{GB+2*i+1}', None) for i in range(5)], 7)
    st(8)
    X = GB + 10
    for i in range(5): unpack(a, f'v{X+2*i}', f'v{X+2*i+1}', f'v{GB+2*i}')
    ln_stats(a, X, 20)
    ln_apply(a, X, 10, 20)
    a(f'v_lshlrev_b32 v11, 2, v0')
    modulate(a, X, RS, 20, 'v11', H2, 5)
    a('s_waitcnt lgkmcnt(0)')
    st(9)
    a('L_T_FBAR:')
    a('s_barrier')
    a(f'v_lshlrev_b32 v11, 4, v4')
    for s_ in range(16): a(f'ds_read_b128 v[{GB+4*s_}:{GB+4*s_+3}], v11 offset:{H2 + s_*64}')
    for s_ in range(20):
        if s_ < 16: a(f's_waitcnt lgkmcnt({min(15, 15 - s_ + min(s_, 4))})')
        else: a(f's_waitcnt lgkmcnt({19 - s_})')
        c = '0' if s_ == 0 else 'v[16:19]'
        r = GB + 4 * (s_ % 16)
        a(f'v_mfma_f32_16x16x32_bf16 v[16:19], v[{r}:{r+3}], v[{FB+4*s_}:{FB+4*s_+3}], {c}')
        if s_ < 4: a(f'ds_read_b128 v[{r}:{r+3}], v11 offset:{H2 + (16+s_)*64}')
    rbf(a, 'v16', 'v16')
    a(f'''v_mov_b32_dpp v17, v16 row_shl:8 row_mask:0xf bank_mask:0xf
    v_mul_f32 v18, v16, v16
    v_mul_f32 v18, {f2h(0.044715)}, v18
    v_fma_f32 v18, v18, v16, v16
    v_mul_f32 v18, {f2h(-2.0*0.7978845608028654*LOG2E)}, v18
    v_exp_f32 v18, v18
    v_add_f32 v18, 1.0, v18
    v_rcp_f32 v19, v18
    v_mul_f32 v20, v16, v19
    ''')
    rbf(a, 'v20', 'v20')
    a('v_mul_f32 v20, v20, v17')
    a(f'''v_cvt_pk_bf16_f32 v20, v20, v20
    s_lshl_b32 s56, s3, 4
    s_add_u32 s56, s56, {HH}
    v_lshl_add_u32 v21, v0, 1, s56
    s_mov_b64 exec, 0xff
    ds_write_b16 v21, v20
    s_mov_b64 exec, -1
    s_waitcnt lgkmcnt(0)
    s_barrier
    v_lshlrev_b32 v11, 4, v4
    ds_read_b128 v[{GB}:{GB+3}], v11 offset:{HH}
    v_cmp_eq_u32 s[56:57], 1, v4
    v_cmp_eq_u32 s[58:59], 2, v4
    v_cmp_eq_u32 s[60:61], 3, v4
    s_mul_i32 s62, s3, {10*54*128}
    s_lshl_b32 s61, s65, 7''')
    a.lines.pop()
    a(f'''s_lshl_b32 s76, s65, 7
    s_add_u32 s62, s62, s76
    s_add_u32 s62, s62, {W_D}
    v_and_b32 v11, 15, v0
    v_lshlrev_b32 v11, 3, v11
    v_mul_u32_u24 v12, {54*128}, v4
    v_add_u32 v12, v12, v11
    v_mov_b32 v25, s12
    s_waitcnt lgkmcnt(0)''')
    DD = GB + 4
    for i in range(10):
        a(f'v_mfma_f32_16x16x32_bf16 v[{DD+4*i}:{DD+4*i+3}], v[{GB}:{GB+3}], v[{FA+4*i}:{FA+4*i+3}], 0')
    for grp in range(3):
        n = 4 if grp < 2 else 2
        b = DD + 16 * grp
        if n == 4:
            a(f'''v_cndmask_b32_e64 v24, v{b}, v{b+4}, s[56:57]
            v_cndmask_b32_e64 v24, v24, v{b+8}, s[58:59]
            v_cndmask_b32_e64 v24, v24, v{b+12}, s[60:61]
            buffer_store_dwordx2 v[24:25], v12, s[8:11], s62 offen sc1
            s_add_u32 s62, s62, {4*54*128}''')
        else:
            a(f'''v_cndmask_b32_e64 v26, v{b}, v{b+4}, s[56:57]
            s_mov_b32 s74, -1
            s_mov_b32 s75, 0
            s_mov_b64 exec, s[74:75]
            buffer_store_dwordx2 v[26:27], v12, s[8:11], s62 offen sc1
            s_mov_b64 exec, -1''')
    st(10)
    a('L_T_END:')
    st(12)
    a.stamp_store('v31')
    a('s_endpgm')

def build(fname, **opt):
    a = Gen(opt)
    a('''KSTART:
    s_cmp_ge_u32 s2, 256
    s_cbranch_scc1 L_EXIT
    v_lshrrev_b32 v1, 6, v0
    v_and_b32 v0, 63, v0
    s_and_b32 s4, s2, 7
    v_readfirstlane_b32 s3, v1
    s_lshr_b32 s5, s2, 3
    s_cmp_ge_u32 s3, 4
    s_cbranch_scc1 L_STREAM''')
    helper(a)
    streamer(a)
    a('L_EXIT:\ns_endpgm\nKEND:')
    lines, n = pad(a.lines)
    msgs = check_branches(lines)
    for m in msgs: print('HAZARD', m)
    body = '\n'.join(lines) + '\n'
    txt = f'; @launch grid=(256,1,1) block=(512,1,1) lds={LDS_SZ}\n; DESC {opt}\n' + HEADER_TAIL + kernel_wrap(KN + '_kernel', body, 256, 102)
    open(fname, 'w').write(txt)
    print(fname, 'lines', len(lines), 'nops added', n, 'lds', LDS_SZ)

if __name__ == '__main__':
    import json
    if len(sys.argv) > 1:
        for name, opt in json.loads(sys.argv[1]).items(): build(name, **opt)
    else:
        build('k_v2.s', stamps=True)
        build('k_v2n.s', stamps=False)
```
